```python
import torch

def _softmax(x, axis=-1):
    return torch.softmax(x, dim=axis)
def _gelu(x):
    return torch.nn.functional.gelu(x, approximate="tanh")
def _silu(x):
    return torch.nn.functional.silu(x)
def _sigmoid(x):
    return torch.sigmoid(x)
def _layernorm(x, axis=-1, eps=1e-5):
    m = x.mean(dim=axis, keepdim=True)
    v = x.var(dim=axis, keepdim=True, unbiased=False)
    return (x - m) / torch.sqrt(v + eps)
def _scatter_add(tgt, idx, src, axis=0):
    return tgt.clone().index_add_(axis, idx, src)
def _segment_sum(src, seg, n):
    out = torch.zeros((n,) + src.shape[1:], dtype=src.dtype)
    return out.index_add_(0, seg, src)
def _pad(x, pw):
    flat = tuple(v for pair in reversed(pw) for v in pair)
    return torch.nn.functional.pad(x, flat)

kernel_name = 'gated_mix__linear_kernel_hedgehog__glu_gated_swiglu__prompt'

def setup_inputs():

    _w = (lambda a: (lambda t: t.to(torch.bfloat16) if t.is_floating_point() else t)(torch.as_tensor(a)))
    def _A_setup():
        B, S, D, H = 1, 2048, 448, 16
        Dh = D // H
        return {
            "x": _w((lambda *s: torch.randn(*s, dtype=torch.bfloat16) * 0.05)(B, S, D)),
            "wqkv": _w((lambda *s: torch.randn(*s, dtype=torch.bfloat16) * 0.8)(D, 3 * D)),
            "w_phi": _w((lambda *s: torch.randn(*s, dtype=torch.bfloat16) * 0.8)(H, Dh, Dh) * (Dh ** -0.5)),
            "wo": _w((lambda *s: torch.randn(*s, dtype=torch.bfloat16) * 0.05)(D, D)),
        }
    _A_in = _A_setup()

    def _B_setup():
        B, S, D, F = 1, 2048, 448, 1792
        return {
            "x": _w((lambda *s: torch.randn(*s, dtype=torch.bfloat16) * 0.05)(B, S, D)),
            "w1": _w((lambda *s: torch.randn(*s, dtype=torch.bfloat16) * 1.6)(D, F) * (2.0 / D) ** 0.5),
            "w3": _w((lambda *s: torch.randn(*s, dtype=torch.bfloat16) * 1.6)(D, F) * (2.0 / D) ** 0.5),
            "w2": _w((lambda *s: torch.randn(*s, dtype=torch.bfloat16) * 1.6)(F, D) * (2.0 / F) ** 0.5),
        }
    _B_in = _B_setup()

    return {
        "A_x": _A_in["x"],
        "A_wqkv": _A_in["wqkv"],
        "A_w_phi": _A_in["w_phi"],
        "A_wo": _A_in["wo"],
        "B_x": _B_in["x"],
        "B_w1": _B_in["w1"],
        "B_w3": _B_in["w3"],
        "B_w2": _B_in["w2"],
        "gate_w": _w((lambda *s: torch.randn(*s, dtype=torch.bfloat16) * 0.05)(448) * 16.0),
    }

def reference(A_x, A_wqkv, A_w_phi, A_wo, B_x, B_w1, B_w3, B_w2, gate_w):
    def _A_ref(x, wqkv, w_phi, wo):
        B, S, D = x.shape
        H = 16; Dh = D // H
        qkv = (lambda x, *d: x.permute(*d))((x @ wqkv).reshape(B, S, 3, H, Dh), 2, 0, 3, 1, 4)
        q, k, v = qkv[0], qkv[1], qkv[2]
        pq = torch.einsum("bhsd,hdf->bhsf", q, w_phi)
        pk = torch.einsum("bhsd,hdf->bhsf", k, w_phi)
        phi_q = torch.concatenate([_softmax(pq, axis=-1), _softmax(-pq, axis=-1)], axis=-1)
        phi_k = torch.concatenate([_softmax(pk, axis=-1), _softmax(-pk, axis=-1)], axis=-1)
        kv = torch.einsum("bhsf,bhsd->bhfd", phi_k, v)
        z  = torch.einsum("bhsf->bhf", phi_k)
        num = torch.einsum("bhqf,bhfd->bhqd", phi_q, kv)
        den = torch.einsum("bhqf,bhf->bhq", phi_q, z)[..., None] + 1e-6
        o = num / den
        return (lambda x, *d: x.permute(*d))(o, 0, 2, 1, 3).reshape(B, S, D) @ wo

    def _B_ref(x, w1, w3, w2):
        gate = torch.einsum("bsd,df->bsf", x, w1)
        up = torch.einsum("bsd,df->bsf", x, w3)
        h = _silu(gate) * up
        out = torch.einsum("bsf,fd->bsd", h, w2)
        return out

    x = A_x
    g = _sigmoid((x * gate_w).sum(-1, keepdims=True))
    a = _A_ref(x, A_wqkv, A_w_phi, A_wo)
    b = _B_ref(x, B_w1, B_w3, B_w2)
    return g * a + (1 - g) * b
```

```python
import re

TRANS = ("v_exp_f32", "v_log_f32", "v_rcp_f32", "v_rsq_f32", "v_sqrt_f32", "v_sin_f32", "v_cos_f32")
RMW = ("v_fmac_", "v_dot2c_", "v_pk_fmac")


def vr(a, n=1):
    return f"v{a}" if n == 1 else f"v[{a}:{a + n - 1}]"


def sr(a, n=1):
    return f"s{a}" if n == 1 else f"s[{a}:{a + n - 1}]"


_REG = re.compile(r"^-?(?:abs\()?\|?([vs])(?:(\d+)|\[(\d+):(\d+)\])\|?\)?$")


def regs_of(tok):
    tok = tok.strip()
    if tok == "vcc":
        return {"vcc"}
    if tok == "exec":
        return {"exec"}
    if tok == "m0":
        return {"m0"}
    m = _REG.match(tok)
    if not m:
        return set()
    k = m.group(1)
    if m.group(2) is not None:
        return {f"{k}{m.group(2)}"}
    return {f"{k}{i}" for i in range(int(m.group(3)), int(m.group(4)) + 1)}


class Ins:
    __slots__ = ("text", "op", "cls", "dst", "src", "srcC", "srcAB", "data", "states", "wide")

    def __init__(self, text):
        self.text = text
        t = text.split(";")[0].strip()
        self.dst = set()
        self.src = set()
        self.srcC = set()
        self.srcAB = set()
        self.data = set()
        self.states = 1
        self.wide = False
        if not t or t.endswith(":") or t.startswith("."):
            self.op = ""
            self.cls = "none"
            self.states = 0
            return
        parts = t.split(None, 1)
        op = self.op = parts[0]
        rest = parts[1] if len(parts) > 1 else ""
        ops = [o.strip() for o in rest.split(",")] if rest else []
        mods = ""
        if ops:
            last = ops[-1].split(None, 1)
            ops[-1] = last[0]
            mods = last[1] if len(last) > 1 else ""
        R = [regs_of(o) for o in ops]
        if op == "s_nop":
            self.cls = "salu"
            self.states = int(ops[0]) + 1
        elif op.startswith("v_mfma"):
            self.cls = "mfma"
            self.dst = R[0]
            self.srcAB = R[1] | R[2]
            self.srcC = R[3]
            self.src = self.srcAB | self.srcC
        elif op.startswith("v_permlane"):
            self.cls = "permlane"
            self.dst = R[0] | R[1]
            self.src = R[0] | R[1]
        elif op.startswith("v_readfirstlane") or op.startswith("v_readlane"):
            self.cls = "readlane"
            self.dst = R[0]
            self.src = set().union(*R[1:])
        elif op.startswith("v_"):
            self.cls = "trans" if op.startswith(TRANS) else "valu"
            self.dst = R[0]
            self.src = set().union(*R[1:]) if len(R) > 1 else set()
            if op.startswith(RMW):
                self.src |= R[0]
            if "_co_" in op:
                self.dst = R[0] | R[1]
                self.src = set().union(*R[2:])
        elif op.startswith("ds_read"):
            self.cls = "ds"
            self.dst = R[0]
            self.src = R[1]
        elif op.startswith("ds_write"):
            self.cls = "ds"
            self.src = set().union(*R)
        elif op.startswith("buffer_load") or op.startswith("global_load"):
            self.cls = "vmem"
            if re.search(r"\blds\b", mods):
                self.src = set().union(*R) | {"m0"}
            else:
                self.dst = R[0]
                self.src = set().union(*R[1:])
        elif op.startswith("buffer_store") or op.startswith("buffer_atomic"):
            self.cls = "vmem"
            self.src = set().union(*R)
            self.data = R[0]
            self.wide = op.endswith("x4") or op.endswith("x3")
        elif op.startswith("s_"):
            self.cls = "salu"
            if op.startswith(("s_cmp", "s_bitcmp", "s_cbranch", "s_branch", "s_waitcnt", "s_barrier", "s_endpgm",
                              "s_setprio", "s_sleep", "s_setpc")):
                self.src = set().union(*R) if R else set()
            else:
                self.dst = R[0] if R else set()
                self.src = set().union(*R[1:]) if len(R) > 1 else set()
        else:
            raise ValueError("unknown instruction: " + text)


VALUISH = ("valu", "trans", "permlane", "readlane")


def need_states(p, c):
    n = 0
    if p.cls in VALUISH:
        vd = {r for r in p.dst if r[0] == "v" and r != "vcc"}
        sd = p.dst - vd
        if c.cls == "mfma" and vd & c.src:
            n = max(n, 2)
        if c.cls == "permlane" and vd & c.src:
            n = max(n, 2)
        if c.cls == "readlane" and vd & c.src:
            n = max(n, 1)
        if p.cls == "trans" and c.cls in VALUISH and vd & c.src:
            n = max(n, 1)
        if sd:
            if c.cls in VALUISH and sd & c.src:
                n = max(n, 4 if c.cls == "readlane" else 2)
            if c.cls == "vmem" and sd & c.src:
                n = max(n, 5)
            if c.cls == "salu" and sd & c.src:
                n = max(n, 1)
    if p.cls == "mfma":
        passes8 = "32x32" in p.op
        big = 12 if passes8 else 8
        if c.cls == "mfma":
            if p.dst & c.srcAB:
                n = max(n, big)
            if p.dst & c.srcC and p.dst != c.srcC:
                n = max(n, big - 2)
            if p.dst & c.dst and p.dst != c.srcC:
                n = max(n, big)
        elif c.cls in VALUISH or c.cls in ("ds", "vmem"):
            if p.dst & (c.src | c.dst):
                n = max(n, big)
            if c.cls in VALUISH and p.srcC & c.dst:
                n = max(n, 7 if passes8 else 3)
    if p.cls == "salu" and "m0" in p.dst and c.cls == "vmem" and "m0" in c.src:
        n = max(n, 1)
    if p.cls == "vmem" and p.wide and p.data & c.dst:
        n = max(n, 2)
    return n


def pad_hazards(lines):
    out = []
    hist = []
    added = 0
    for text in lines:
        c = Ins(text)
        if c.cls != "none":
            dist = 0
            short = 0
            for p in reversed(hist):
                if dist >= 12:
                    break
                short = max(short, need_states(p, c) - dist)
                dist += p.states
            if short > 0:
                nop = Ins(f"s_nop {short - 1}")
                out.append(nop.text)
                hist.append(nop)
                added += 1
            hist.append(c)
            if len(hist) > 16:
                hist.pop(0)
        out.append(text)
    return out, added


class Prog:
    def __init__(self):
        self.lines = []
        self.vm = 0
        self.vm_done = 0
        self.lg = 0
        self.lg_done = 0
        self.smem_pending = False

    def fork(self):
        p = Prog()
        p.vm, p.vm_done, p.lg, p.lg_done, p.smem_pending = self.vm, self.vm_done, self.lg, self.lg_done, self.smem_pending
        return p

    def __call__(self, s):
        self.lines.append(s)

    def vmem(self, s):
        self.lines.append(s)
        self.vm += 1
        return self.vm

    def ds(self, s):
        self.lines.append(s)
        self.lg += 1
        return self.lg

    def smem(self, s):
        self.lines.append(s)
        self.smem_pending = True

    def wait(self, vm=None, lg=None):
        parts = []
        if vm is not None and vm > self.vm_done:
            n = min(self.vm - vm, 63)
            parts.append(f"vmcnt({n})")
            self.vm_done = self.vm - n
        if lg is not None and (lg > self.lg_done or (self.smem_pending and lg == self.lg)):
            n = 0 if self.smem_pending else min(self.lg - lg, 15)
            parts.append(f"lgkmcnt({n})")
            self.lg_done = self.lg - n
            if n == 0:
                self.smem_pending = False
        if parts:
            self.lines.append("s_waitcnt " + " ".join(parts))

    def wait_all_lg(self):
        if self.lg > self.lg_done or self.smem_pending:
            self.lines.append("s_waitcnt lgkmcnt(0)")
            self.lg_done = self.lg
            self.smem_pending = False

    def wait_all_vm(self):
        self.wait(vm=self.vm)
```

```python
import sys
from asmlib import Prog, pad_hazards, vr, sr

NAME = "gated_mix__linear_kernel_hedgehog__glu_gated_swiglu__prompt"

HEADER = """; Kernarg layout for this problem (96 bytes, ptrs only, base s[0:1]):
;   0 A_x (2048,448) | 8 A_wqkv (448,1344) | 16 A_w_phi (16,28,28) | 24 A_wo (448,448) | 32 B_x (unused by the reference)
;   40 B_w1 (448,1792) | 48 B_w3 (448,1792) | 56 B_w2 (1792,448) | 64 gate_w (448) | 72 d_out | 80 d_debug | 88 d_ws
; One launch, 256 workgroups of 8 waves, one per CU.  Workgroup = (row block of 128 tokens, column role cc):
;   every workgroup : k,v projection of one head, phi_k, partial kv/z added into d_ws
;   cc 0..6         : 128 SwiGLU hidden columns -> h in d_ws, then a 64x64 output tile of [h|o] @ [w2;wo] and the gate mix
; Hand-offs: write-through stores, drained, then a flag word holding a per-launch tag published through d_debug.
"""

WS_H = 0
WS_KV = 0xA00000
WS_FH1 = 0xA40000
WS_FH2 = 0xA41000
WS_FO = 0xA42000
WS_FKV = 0xA43000
WS_STAMP = 0xB00000
WS_SIZE = 0xC00000
OOB = 0x7FFF0000

SLOT = 8192
NSLOT = 19
L_MISC = NSLOT * SLOT
L_GATE = L_MISC
L_LOGIT = L_MISC + 1024
LDS_BYTES = 163840

SX, SW1, SW3, SQKV, SW2, SWO, SWS, SDBG, SOUT, SPHI, SGATE = 4, 8, 12, 16, 20, 24, 28, 32, 60, 64, 68
P_X, P_QKV, P_PHI, P_WO, P_W1, P_W3, P_W2, P_GATE, P_OUT, P_DBG, P_WS = 36, 38, 40, 42, 46, 48, 50, 52, 54, 56, 58
sW, sW1K, sW2K, sRB, sHALF, sCC, sHEAD, sT0, sT1, sTAG, sL, sSPIN = 72, 73, 74, 75, 76, 77, 78, 79, 80, 81, 82, 83
sMHI, sMG = 84, 86
sTAB = 88
sR4, sROT, sTG, sCH = 3, 44, 45, 2
sST = 36

vL16, vWP, vKV, vX0, vX1 = 0, 1, 2, 3, 4
vW2, vWO, vH = 2, 3, 4
aP, aK = 5, 8
vSTAMP = 11
TMP = 12
WF = 40
ACCK, ACC1, ACC0, X = 64, 80, 112, 144
PD = 2
NWF = PD + 1

LOG2E = 0x3FB8AA3B
NLOG2E = 0xBFB8AA3B
EPS = 0x358637BD
SPIN_MAX = 200000

G_KV, G_P1, G_P2, G_E, G_B1, G_B2, G_B3, G_FIN = 0, 7, 14, 21, 22, 29, 36, 40


class Cfg:
    prof = False
    pace_f = None
    g_scr = 10
    g_zf = 2
    g_tagload = 5
    g_kvflag = 17
    g_h1flag = 19
    fill_kv = 9
    fill_f = 5
    fill_q = 9
    h1_first = 8
    prefetch_code = True


class Item:
    def __init__(self, kind, idx, stage, nslots=1, ninstr=1):
        self.kind, self.idx, self.stage, self.nslots, self.ninstr = kind, idx, stage, nslots, ninstr
        self.slot = None
        self.issue = None

    @property
    def addr(self):
        return self.slot * SLOT


def make_plan(role, cfg):
    items = []
    for i in range(7):
        items.append(Item("x", i, G_KV + i, 2, 2))
        items.append(Item("kv", i, G_KV + i))
    for p, g0 in ((0, G_P1), (1, G_P2)):
        for i in range(7):
            items.append(Item("pa", (p, i), g0 + i))
            items.append(Item("pb", (p, i), g0 + i))
    if role == "F":
        for j in range(14):
            items.append(Item("w2", (0, j), G_B1 + j // 2))
        for j in range(14):
            items.append(Item("w2", (1, j), G_B2 + j // 2))
        for j in range(8):
            items.append(Item("wo", j, G_B3 + j // 2))
    pace = {-1: 6}
    for g in range(0, 7):
        pace[g] = 3
    pace[5] = pace[6] = 4
    for g in range(7, 21):
        pace[g] = 4
    pace[G_E] = 6
    for g in range(G_B1, G_FIN):
        pace[g] = 3
    if cfg.pace_f:
        pace.update(cfg.pace_f)
    free = [True] * NSLOT
    fixed = {}
    if role == "Q":
        fixed["wphi"] = 17
        free[17] = free[18] = False
    scr = (14, 15, 16)
    fixed["scr"] = scr[0]
    scr_from, scr_to = G_P1, cfg.g_scr + 3

    def release_stage(s):
        if s in (G_E - 2, G_E - 1):
            return G_E
        return s + 2

    live = []
    nxt = 0
    sched = {}
    for g in range(-1, G_FIN):
        for it in list(live):
            if release_stage(it.stage) <= g:
                for k in range(it.nslots):
                    free[it.slot + k] = True
                live.remove(it)
        budget = pace.get(g, 0)
        sched[g] = []
        while nxt < len(items):
            it = items[nxt]
            must = it.stage <= g + 1
            if budget < it.ninstr and not must:
                break

            def ok(s):
                if s + it.nslots > NSLOT:
                    return False
                for k in range(it.nslots):
                    if not free[s + k]:
                        return False
                    if s + k in scr and not (release_stage(it.stage) <= scr_from or g >= scr_to):
                        return False
                return True
            cand = [s for s in range(0, NSLOT, it.nslots) if ok(s)]
            if not cand:
                assert not must, (role, g, it.kind, it.idx)
                break
            if it.nslots == 1:
                lone = [s for s in cand if (s ^ 1) >= NSLOT or not free[s ^ 1]]
                s = (lone or cand)[-1] if g < G_P1 else cand[0]
            else:
                s = cand[0]
            it.slot, it.issue = s, g
            for k in range(it.nslots):
                free[s + k] = False
            live.append(it)
            sched[g].append(it)
            budget -= it.ninstr
            nxt += 1
    assert nxt == len(items)
    by = {(it.kind, it.idx): it for it in items}
    need = {}
    for it in items:
        need.setdefault(it.stage, []).append(it)
    return dict(items=items, sched=sched, by=by, need=need, fixed=fixed)


def lds_ref(base3, addr):
    return f"v{base3 + (addr >> 16)}", addr & 0xFFFF


class Gen:
    def __init__(self, P, role, grp, plan, cfg):
        self.P, self.role, self.grp, self.plan, self.cfg = P, role, grp, plan, cfg
        self.tok = {}
        self.fill = []
        self.nfill = 0
        self.pre_bar = {}
        self.post_bar = {}
        self.pending = []
        self.uid = f"{role}{grp}"
        self.nstamp = 0
        self.lab = 0
        self.switched = set()

    def label(self, s):
        self.lab += 1
        return f"L_{self.uid}_{s}{self.lab}"

    def stamp(self):
        if not self.cfg.prof:
            return
        P = self.P
        P.smem(f"s_memtime {sr(sST, 2)}")
        P.wait_all_lg()
        P(f"v_writelane_b32 v{vSTAMP}, s{sST}, {self.nstamp}")
        self.nstamp += 1

    def issue_parts(self, it):
        P = self.P
        k = it.kind

        def dma(wreg, dst, mul_reg, mul, voff, srd, add=0):
            def f():
                P(f"s_add_u32 m0, s{wreg}, {dst}")
                P(f"s_mul_i32 s{sT0}, s{mul_reg}, {mul}")
                if add:
                    P(f"s_add_u32 s{sT0}, s{sT0}, {add}")
                self.tok[id(it)] = P.vmem(f"buffer_load_dwordx4 v{voff}, {sr(srd, 4)}, s{sT0} offen lds")
            return f
        if k == "x":
            return [dma(sW2K, it.addr, sTAB + it.idx, 128, vX0, SX), dma(sW2K, it.addr + 1024, sTAB + it.idx, 128, vX1, SX)]
        if k == "kv":
            return [dma(sW1K, it.addr, sTAB + it.idx, 64 * 2688, vKV, SQKV)]
        if k in ("pa", "pb"):
            p, i = it.idx
            if self.role == "F":
                return [dma(sW1K, it.addr, sTAB + i, 64 * 3584, vWP, SW1 if k == "pa" else SW3, add=128 * p)]
            return [dma(sW1K, it.addr, sTAB + i, 64 * 2688, vWP, SQKV, add=224 * p + (32 * 2688 if k == "pb" else 0))]
        if k == "w2":
            b, j = it.idx
            f = dma(sW1K, it.addr, sTAB + j, 128 * 896, vW2, SW2, add=64 * 896 * b)
            if (b, j) == (0, 0):
                def g():
                    self.setup_b_sources()
                    f()
                return [g]
            return [f]
        if k == "wo":
            def f():
                P(f"s_add_u32 s{sT1}, s{sTAB}, {it.idx}")
                P(f"s_and_b32 s{sT1}, s{sT1}, 7")
                dma(sW1K, it.addr, sT1, 56 * 896, vWO, SWO)()
            return [f]
        raise ValueError(k)

    def setup_b_sources(self):
        P = self.P
        P(f"s_lshl_b32 s{sT0}, s{sCC}, 1")
        P(f"s_lshl_b32 s{sT1}, s{sR4}, 2")
        P(f"s_add_u32 s{sT0}, s{sT0}, s{sT1}")
        P(f"s_cmp_ge_u32 s{sT0}, 14")
        P(f"s_cselect_b32 s{sT1}, 14, 0")
        P(f"s_sub_u32 s{sTAB}, s{sT0}, s{sT1}")
        for j in range(1, 14):
            P(f"s_add_u32 s{sT0}, s{sTAB + j - 1}, 1")
            P(f"s_cmp_eq_u32 s{sT0}, 14")
            P(f"s_cselect_b32 s{sTAB + j}, 0, s{sT0}")
        P(f"v_lshrrev_b32 v{vW2}, 7, v{vL16}")
        P(f"v_lshl_add_u32 v{vW2}, s{sW}, 3, v{vW2}")
        P(f"v_mul_u32_u24 v{vW2}, 896, v{vW2}")
        P(f"v_lshrrev_b32 v{vWO}, 2, v{vL16}")
        P(f"v_xor_b32 v{vWO}, v{vWO}, v{vL16}")
        P(f"v_and_b32 v{vWO}, 64, v{vWO}")
        P(f"v_and_b32 v{vH}, 48, v{vL16}")
        P(f"v_add3_u32 v{vW2}, v{vW2}, v{vWO}, v{vH}")
        P(f"s_mul_i32 s{sT0}, s{sCH}, 3584")
        P(f"v_subrev_u32 v{vWO}, s{sT0}, v{vW2}")
        P(f"s_lshl_b32 s{sT0}, s{sRB}, 2")
        P(f"s_lshl_b32 s{sT1}, s{sHALF}, 1")
        P(f"s_add_u32 s{sT0}, s{sT0}, s{sT1}")
        P(f"s_add_u32 s{sT0}, s{sT0}, s{sCH}")
        P(f"s_mul_i32 s{sT0}, s{sT0}, 144")
        P(f"s_add_u32 s{sT0}, s{sT0}, s{sTG}")
        P(f"s_lshl_b32 s{sT0}, s{sT0}, 10")
        P(f"v_add_u32 v{vH}, s{sT0}, v{vL16}")

    def queue_stage(self, g):
        for it in self.plan["sched"].get(g, []):
            self.pending += self.issue_parts(it)

    def flush_pending(self):
        while self.pending:
            self.pending.pop(0)()

    def pull(self, n):
        while n > 0 and self.fill:
            try:
                r = next(self.fill[0])
            except StopIteration:
                self.fill.pop(0)
                continue
            if r == "skip":
                return
            n -= 1

    def drain_fill(self):
        while self.fill:
            self.pull(1000)

    def barrier(self, g):
        P = self.P
        self.flush_pending()
        for f in self.pre_bar.get(g, []):
            f()
        toks = [self.tok[id(it)] for it in self.plan["need"].get(g, [])]
        if toks:
            P.wait(vm=max(toks))
        self.stamp()
        P("s_barrier")
        self.queue_stage(g)
        for f in self.post_bar.get(g, []):
            f()

    def run_steps(self, steps):
        P = self.P
        n_steps = len(steps)
        rtok = {}
        for n in range(-PD, n_steps):
            m = n + PD
            if m < n_steps:
                st = steps[m]
                if st.get("bar") is not None:
                    self.barrier(st["bar"])
                if st.get("pre_reads"):
                    st["pre_reads"]()
                rtok[m] = st["reads"](WF + 8 * (m % NWF))
            if n >= 0:
                st = steps[n]
                if st.get("pre"):
                    st["pre"]()
                P.wait(lg=rtok[n])
                for mf in st["mfma"](WF + 8 * (n % NWF)):
                    P(mf)
                    if self.pending:
                        self.pending.pop(0)()
                    self.pull(self.nfill)

    def tr2(self, dst, base3, addr, second):
        a, off = lds_ref(base3, addr)
        assert off + second < 65536
        self.P.ds(f"ds_read_b64_tr_b16 {vr(dst, 2)}, {a} offset:{off}")
        return self.P.ds(f"ds_read_b64_tr_b16 {vr(dst + 2, 2)}, {a} offset:{off + second}")

    def steps_kv(self):
        P, by = self.P, self.plan["by"]
        out = []
        for n in range(28):
            i, s = divmod(n, 4)

            def reads(buf, n=n, i=i, s=s):
                a, off = lds_ref(ACC0 + 3 * s, by[("x", i)].addr)
                P.ds(f"ds_read_b128 {vr(X + 4 * n, 4)}, {a} offset:{off}")
                self.tr2(buf, aK, by[("kv", i)].addr + 2048 * s, 512)
                P(f"s_mov_b64 exec, {sr(sMG, 2)}")
                t = P.ds(f"ds_read_b128 {vr(buf, 4)}, v{ACC0 + 12} offset:{32 * n}")
                P("s_mov_b64 exec, -1")
                return t

            def mfma(buf, n=n):
                c = vr(ACCK, 16) if n else "0"
                return [f"v_mfma_f32_32x32x16_bf16 {vr(ACCK, 16)}, {vr(buf, 4)}, {vr(X + 4 * n, 4)}, {c}"]
            out.append(dict(bar=G_KV + i if s == 0 else None, reads=reads, mfma=mfma))
        return out

    def steps_p(self, p):
        P, by = self.P, self.plan["by"]
        acc = ACC0 if p == 0 else ACC1
        g0 = G_P1 if p == 0 else G_P2
        out = []
        for n in range(28):
            i, s = divmod(n, 4)

            def reads(buf, i=i, s=s):
                if self.role == "F":
                    self.tr2(buf, aP, by[("pa", (p, i))].addr + 2048 * s, 512)
                    return self.tr2(buf + 4, aP, by[("pb", (p, i))].addr + 2048 * s, 512)
                ad = by[("pa" if s < 2 else "pb", (p, i))].addr + 4096 * (s & 1)
                self.tr2(buf, aP, ad, 1024)
                return self.tr2(buf + 4, aK, ad, 1024)

            def mfma(buf, n=n):
                r = []
                for t in range(2):
                    d = vr(acc + 16 * t, 16)
                    r.append(f"v_mfma_f32_32x32x16_bf16 {d}, {vr(buf + 4 * t, 4)}, {vr(X + 4 * n, 4)}, {d if n else '0'}")
                return r
            st = dict(bar=g0 + i if s == 0 else None, reads=reads, mfma=mfma)
            if n == 0 and p == 0 and self.role == "Q":
                st["pre_reads"] = self.setup_q_second_addr
            out.append(st)
        return out

    def bases3(self, r):
        self.P(f"v_add_u32 v{r + 1}, 0x10000, v{r}")
        self.P(f"v_add_u32 v{r + 2}, 0x20000, v{r}")

    def setup_q_second_addr(self):
        P = self.P
        P(f"v_add_u32 v{aK}, 56, v{aP}")
        P(f"v_and_b32 v{aK}, 0xff, v{aK}")
        P(f"v_and_b32 v{aK + 1}, 0xff00, v{aP}")
        P(f"v_or_b32 v{aK}, v{aK}, v{aK + 1}")
        self.bases3(aK)

    def spin(self, load, check):
        P = self.P
        top, done = self.label("spin"), self.label("ok")
        P(f"s_mov_b32 s{sSPIN}, 0")
        P(f"{top}:")
        check()
        P(f"s_cbranch_vccz {done}")
        P(load)
        P(f"s_add_u32 s{sSPIN}, s{sSPIN}, 1")
        P(f"s_cmp_lt_u32 s{sSPIN}, {SPIN_MAX}")
        P("s_waitcnt vmcnt(0)")
        P(f"s_cbranch_scc1 {top}")
        P(f"{done}:")

    def flag_store(self, soff_setup, srd, data_is_tag=True, only_if_zero=None):
        P = self.P
        a, d = TMP + 26, TMP + 27
        P(f"v_or_b32 v{a}, s{sTG}, v{vL16}")
        if only_if_zero is not None:
            P(f"v_or_b32 v{a}, s{only_if_zero}, v{a}")
        P(f"v_cmp_eq_u32 vcc, 0, v{a}")
        P(f"v_mov_b32 v{d}, {OOB}")
        P(f"v_cndmask_b32 v{a}, v{d}, v{a}, vcc")
        P(f"v_mov_b32 v{d}, {'s%d' % sTAG if data_is_tag else 1}")
        soff_setup()
        P.vmem(f"buffer_store_dword v{d}, v{a}, {sr(srd, 4)}, s{sT0} offen sc1")

    def softmax(self, acc, wphi, kb, ep, out_p, out_m, load_wphi=None):
        P = self.P
        m0, m1, m2, m3 = TMP + 22, TMP + 23, TMP + 24, TMP + 25
        tw = load_wphi() if load_wphi else None
        for j in range(8):
            P(f"v_cvt_pk_bf16_f32 v{kb + j}, v{acc + 2 * j}, v{acc + 2 * j + 1}")
            yield
        if tw is not None:
            P.wait(lg=tw)
        P(f"v_mfma_f32_32x32x16_bf16 {vr(acc, 16)}, {vr(wphi, 4)}, {vr(kb, 4)}, 0")
        P(f"v_mfma_f32_32x32x16_bf16 {vr(acc, 16)}, {vr(wphi + 4, 4)}, {vr(kb + 4, 4)}, {vr(acc, 16)}")
        yield "skip"
        yield "skip"
        P(f"v_max_f32 v{m0}, v{acc}, v{acc + 1}")
        yield
        P(f"v_min_f32 v{m1}, v{acc}, v{acc + 1}")
        yield
        for j in range(2, 14, 2):
            P(f"v_max3_f32 v{m0}, v{m0}, v{acc + j}, v{acc + j + 1}")
            yield
            P(f"v_min3_f32 v{m1}, v{m1}, v{acc + j}, v{acc + j + 1}")
            yield
        P(f"v_mul_f32 v{m0}, s{sL}, v{m0}")
        yield
        P(f"v_mul_f32 v{m1}, {NLOG2E:#x}, v{m1}")
        yield
        P(f"v_permlane32_swap_b32 v{m0}, v{m1}")
        P(f"v_max_f32 v{m0}, v{m0}, v{m1}")
        P(f"v_mov_b32 v{m1}, v{m0}")
        yield
        P(f"v_permlane32_swap_b32 v{m0}, v{m1}")
        yield
        for j in range(14):
            P(f"v_fma_f32 v{ep + j}, v{acc + j}, s{sL}, -v{m0}")
            yield
            P(f"v_fma_f32 v{acc + j}, -v{acc + j}, s{sL}, -v{m1}")
            yield
            P(f"v_exp_f32 v{ep + j}, v{ep + j}")
            yield
            P(f"v_exp_f32 v{acc + j}, v{acc + j}")
            yield
            if j == 2:
                P(f"v_add_f32 v{m2}, v{ep}, v{ep + 1}")
                yield
                P(f"v_add_f32 v{m3}, v{acc}, v{acc + 1}")
                yield
            elif j > 2:
                P(f"v_add_f32 v{m2}, v{m2}, v{ep + j - 1}")
                yield
                P(f"v_add_f32 v{m3}, v{m3}, v{acc + j - 1}")
                yield
        P(f"v_add_f32 v{m2}, v{m2}, v{ep + 13}")
        yield
        P(f"v_add_f32 v{m3}, v{m3}, v{acc + 13}")
        yield
        P(f"v_permlane32_swap_b32 v{m2}, v{m3}")
        P(f"v_add_f32 v{m2}, v{m2}, v{m3}")
        P(f"v_rcp_f32 v{m2}, v{m2}")
        yield
        P(f"v_mov_b32 v{m3}, v{m2}")
        yield
        P(f"v_permlane32_swap_b32 v{m2}, v{m3}")
        yield
        for src, sc, dst in ((ep, m2, out_p), (acc, m3, out_m)):
            for j in range(0, 14, 2):
                P(f"v_mul_f32 v{src + j}, v{src + j}, v{sc}")
                yield
                P(f"v_mul_f32 v{src + j + 1}, v{src + j + 1}, v{sc}")
                yield
                P(f"v_cvt_pk_bf16_f32 v{dst + j // 2}, v{src + j}, v{src + j + 1}")
                yield
            P(f"v_mov_b32 v{dst + 7}, 0")
            yield

    def wphi_from_lds(self, hsel, dst):
        def f():
            P = self.P
            a = TMP + 21
            hsel()
            P(f"v_add_u32 v{a}, s{sT1}, v{vL16}")
            P.ds(f"ds_read_b128 {vr(dst, 4)}, v{a}")
            return P.ds(f"ds_read_b128 {vr(dst + 4, 4)}, v{a} offset:1024")
        return f

    def kv_epi_a(self):
        P = self.P
        scr = self.plan["fixed"]["scr"] * SLOT
        outp, outm = ACC1 + 16, ACC1 + 24
        yield "skip"
        yield "skip"
        if self.role == "F":
            sm = self.softmax(ACCK, ACC1, ACC1 + 8, TMP, outp, outm)
        else:
            base = self.plan["fixed"]["wphi"] * SLOT + 7 * 2048
            sm = self.softmax(ACCK, ACC1, ACC1 + 8, TMP, outp, outm,
                              self.wphi_from_lds(lambda: P(f"s_mov_b32 s{sT1}, {base}"), ACC1))
        yield from sm
        a, t, u = TMP, TMP + 1, TMP + 2
        P(f"v_bfe_u32 v{t}, v{vL16}, 4, 5")
        P(f"v_lshl_add_u32 v{a}, s{sTG}, 5, v{t}")
        P(f"v_lshlrev_b32 v{a}, 7, v{a}")
        yield
        P(f"v_and_b32 v{u}, 2, v{t}")
        P(f"v_lshl_or_b32 v{a}, v{u}, 5, v{a}")
        P(f"v_and_b32 v{u}, 12, v{t}")
        yield
        P(f"v_lshl_or_b32 v{a}, v{u}, 2, v{a}")
        P(f"v_lshrrev_b32 v{u}, 9, v{vL16}")
        P(f"v_xor_b32 v{u}, v{u}, v{t}")
        yield
        P(f"v_and_b32 v{u}, 1, v{u}")
        P(f"v_lshl_or_b32 v{a}, v{u}, 3, v{a}")
        P(f"v_add_u32 v{a}, {scr}, v{a}")
        yield
        for sg, src in ((0, outp), (1, outm)):
            for g in range(4):
                x = 64 * sg + 16 * g
                r = a
                if x:
                    r = TMP + 3 + (g & 1)
                    P(f"v_xor_b32 v{r}, {x}, v{a}")
                P.ds(f"ds_write_b64 v{r}, {vr(src + 2 * g, 2)}")
                yield

    def kv_epi_b1(self):
        P = self.P
        scr = self.plan["fixed"]["scr"] * SLOT + 16384
        vb = ACC1
        a, t, u = TMP, TMP + 1, TMP + 2
        yield "skip"
        yield "skip"
        P(f"v_bfe_u32 v{t}, v{vL16}, 4, 5")
        P(f"v_lshl_add_u32 v{a}, s{sTG}, 5, v{t}")
        yield
        if self.role == "F":
            P(f"v_lshlrev_b32 v{u}, 2, v{a}")
            P(f"v_add_u32 v{u}, {L_LOGIT}, v{u}")
            P(f"s_mov_b64 exec, {sr(sMHI, 2)}")
            P.ds(f"ds_write_b32 v{u}, v{ACCK + 12}")
            P("s_mov_b64 exec, -1")
            yield
        for j in range(8):
            P(f"v_cvt_pk_bf16_f32 v{vb + j}, v{ACCK + 2 * j}, v{ACCK + 2 * j + 1}")
            yield
        P(f"v_mov_b32 v{u}, 0x3f80")
        P(f"v_cndmask_b32 v{vb + 6}, v{vb + 6}, v{u}, {sr(sMHI, 2)}")
        P(f"v_cndmask_b32 v{vb + 7}, v{vb + 7}, 0, {sr(sMHI, 2)}")
        yield
        P(f"v_lshlrev_b32 v{a}, 6, v{a}")
        P(f"v_bfe_u32 v{t}, v{t}, 1, 3")
        P(f"v_lshrrev_b32 v{u}, 9, v{vL16}")
        yield
        P(f"v_xor_b32 v{t}, v{t}, v{u}")
        P(f"v_lshl_or_b32 v{a}, v{t}, 3, v{a}")
        P(f"v_add_u32 v{a}, {scr}, v{a}")
        yield
        for g in range(4):
            r = a
            if g:
                r = TMP + 3 + (g & 1)
                P(f"v_xor_b32 v{r}, {16 * g}, v{a}")
            P.ds(f"ds_write_b64 v{r}, {vr(vb + 2 * g, 2)}")
            yield

    def kv_epi_b2(self):
        P = self.P
        scr = self.plan["fixed"]["scr"] * SLOT
        ap0, ap1, av0, av1, t, u, r_ = TMP, TMP + 1, TMP + 2, TMP + 3, TMP + 4, TMP + 5, TMP + 6
        P(f"v_bfe_u32 v{r_}, v{vL16}, 6, 2")
        P(f"v_lshrrev_b32 v{t}, 9, v{vL16}")
        P(f"v_lshl_add_u32 v{u}, v{t}, 3, v{r_}")
        yield
        P(f"v_lshlrev_b32 v{ap0}, 7, v{u}")
        P(f"v_lshlrev_b32 v{av0}, 6, v{u}")
        P(f"v_bfe_u32 v{ap1}, v{vL16}, 4, 2")
        yield
        P(f"v_bfe_u32 v{av1}, v{vL16}, 8, 1")
        P(f"v_lshl_or_b32 v{ap1}, v{av1}, 2, v{ap1}")
        P(f"v_lshrrev_b32 v{u}, 1, v{u}")
        yield
        P(f"v_xor_b32 v{u}, v{u}, v{ap1}")
        P(f"v_lshl_or_b32 v{av0}, v{u}, 3, v{av0}")
        P(f"v_add_u32 v{av0}, {scr + 16384}, v{av0}")
        yield
        P(f"v_xor_b32 v{av1}, 16, v{av0}")
        P(f"v_and_b32 v{u}, 1, v{r_}")
        P(f"v_lshl_or_b32 v{u}, v{t}, 2, v{u}")
        yield
        P(f"v_lshrrev_b32 v{r_}, 1, v{r_}")
        P(f"s_and_b32 s{sT1}, s{sW}, 1")
        P(f"v_xor_b32 v{r_}, s{sT1}, v{r_}")
        yield
        P(f"v_lshl_or_b32 v{u}, v{r_}, 3, v{u}")
        P(f"v_xor_b32 v{u}, v{u}, v{ap1}")
        P(f"v_lshl_or_b32 v{ap0}, v{u}, 3, v{ap0}")
        yield
        P(f"v_add_u32 v{ap0}, {scr}, v{ap0}")
        P(f"v_xor_b32 v{ap1}, 16, v{ap0}")
        yield
        toks = {}

        def rd(n):
            b = ACC1 + 8 * (n % 4)
            P.ds(f"ds_read_b64_tr_b16 {vr(b, 2)}, v{ap0} offset:{2048 * n}")
            P.ds(f"ds_read_b64_tr_b16 {vr(b + 2, 2)}, v{ap1} offset:{2048 * n + 512}")
            P.ds(f"ds_read_b64_tr_b16 {vr(b + 4, 2)}, v{av0} offset:{1024 * n}")
            toks[n] = P.ds(f"ds_read_b64_tr_b16 {vr(b + 6, 2)}, v{av1} offset:{1024 * n + 256}")
        rd(0)
        yield "skip"
        for n in range(8):
            if n + 1 < 8:
                rd(n + 1)
            b = ACC1 + 8 * (n % 4)
            P.wait(lg=toks[n])
            P(f"v_mfma_f32_32x32x16_bf16 {vr(ACCK, 16)}, {vr(b, 4)}, {vr(b + 4, 4)}, {vr(ACCK, 16) if n else '0'}")
            yield "skip"
        P(f"v_lshrrev_b32 v{t}, 2, v{vL16}")
        P(f"s_and_b32 s{sT1}, s{sW}, 1")
        P(f"s_lshl_b32 s{sT1}, s{sT1}, 12")
        P(f"v_add_u32 v{t}, s{sT1}, v{t}")
        yield "skip"
        yield "skip"
        hi, end = self.label("athi"), self.label("atend")
        P(f"s_lshl_b32 s{sT0}, s{sHEAD}, 13")
        P(f"s_add_u32 s{sT0}, s{sT0}, {WS_KV}")
        P("s_nop 7")
        P(f"s_bitcmp1_b32 s{sW}, 1")
        P(f"s_cbranch_scc1 {hi}")
        for j in range(7):
            P(f"buffer_atomic_add_f32 v{ACCK + j}, v{t}, {sr(SWS, 4)}, s{sT0} offen offset:{256 * j}")
        P(f"s_branch {end}")
        P(f"{hi}:")
        for j in range(7, 14):
            self.tok["atom"] = P.vmem(f"buffer_atomic_add_f32 v{ACCK + j}, v{t}, {sr(SWS, 4)}, s{sT0} offen offset:{256 * j}")
        P(f"{end}:")
        yield

    def f_epi(self, p):
        P = self.P
        acc = ACC0 if p == 0 else ACC1
        hb = TMP
        t0 = TMP + 8
        yield "skip"
        yield "skip"
        for j in range(0, 16, 2):
            ts = (t0 + (j & 2), t0 + (j & 2) + 1)
            for e in range(2):
                P(f"v_mul_f32 v{ts[e]}, {NLOG2E:#x}, v{acc + j + e}")
                yield
            for e in range(2):
                P(f"v_exp_f32 v{ts[e]}, v{ts[e]}")
                yield
            for e in range(2):
                P(f"v_mul_f32 v{acc + j + e}, v{acc + j + e}, v{acc + 16 + j + e}")
                yield
            for e in range(2):
                P(f"v_add_f32 v{ts[e]}, 1.0, v{ts[e]}")
                yield
            for e in range(2):
                P(f"v_rcp_f32 v{ts[e]}, v{ts[e]}")
                yield
            for e in range(2):
                P(f"v_mul_f32 v{acc + j + e}, v{acc + j + e}, v{ts[e]}")
                yield
            P(f"v_cvt_pk_bf16_f32 v{hb + j // 2}, v{acc + j}, v{acc + j + 1}")
            yield
        P(f"s_lshl_b32 s{sT0}, s{sRB}, 2")
        P(f"s_add_u32 s{sT0}, s{sT0}, s{sTG}")
        P(f"s_mul_i32 s{sT0}, s{sT0}, 72")
        P(f"s_add_u32 s{sT0}, s{sT0}, s{sCH}")
        P(f"s_mul_i32 s{sT1}, s{sHALF}, 7")
        P(f"s_add_u32 s{sT1}, s{sT1}, s{sCC}")
        P(f"s_lshl_b32 s{sT1}, s{sT1}, 2")
        P(f"s_add_u32 s{sT0}, s{sT0}, s{sT1}")
        P(f"s_add_u32 s{sT0}, s{sT0}, {2 * p}")
        P(f"s_lshl_b32 s{sT0}, s{sT0}, 11")
        P.vmem(f"buffer_store_dwordx4 {vr(hb, 4)}, v{vL16}, {sr(SWS, 4)}, s{sT0} offen sc1")
        self.tok[f"h{p}"] = P.vmem(f"buffer_store_dwordx4 {vr(hb + 4, 4)}, v{vL16}, {sr(SWS, 4)}, s{sT0} offen offset:1024 sc1")
        yield

    def early_setup(self):
        P, cfg = self.P, self.cfg
        t, u, a = TMP, TMP + 1, TMP + 2
        P(f"v_lshrrev_b32 v{t}, 7, v{vL16}")
        P(f"v_add_u32 v{u}, s{sROT}, v{t}")
        P(f"v_cmp_lt_u32 vcc, 6, v{u}")
        P(f"v_subrev_u32 v{a}, 7, v{u}")
        P(f"v_cndmask_b32 v{u}, v{u}, v{a}, vcc")
        P(f"v_and_b32 v{a}, 0x70, v{vL16}")
        P(f"v_lshl_or_b32 v{u}, v{u}, 7, v{a}")
        P(f"s_mov_b32 m0, {L_GATE}")
        P("s_nop 0")
        self.tok["gate"] = P.vmem(f"buffer_load_dwordx4 v{u}, {sr(SGATE, 4)}, 0 offen lds")
        for j in range(4):
            P(f"v_mov_b32 v{TMP + 4 + j}, 0")
        P(f"s_lshl_b32 s{sT0}, s{sHEAD}, 13")
        P(f"s_add_u32 s{sT0}, s{sT0}, s{sW1K}")
        P(f"s_add_u32 s{sT0}, s{sT0}, {WS_KV}")
        P(f"s_cmp_eq_u32 s{sRB}, 0")
        P(f"s_cselect_b32 s{sT1}, 0, {OOB}")
        P(f"v_add_u32 v{a}, s{sT1}, v{vL16}")
        self.tok["zero"] = P.vmem(f"buffer_store_dwordx4 {vr(TMP + 4, 4)}, v{a}, {sr(SWS, 4)}, s{sT0} offen sc1")
        if self.role == "Q" or self.grp == "A":
            m, f = TMP + 8, TMP + 9
            P(f"v_bfe_u32 v{m}, v{vL16}, 7, 2")
            P(f"v_bfe_u32 v{f}, v{vL16}, 4, 2")
            P(f"v_lshl_or_b32 v{m}, v{m}, 2, v{f}")
            P(f"v_bfe_u32 v{f}, v{vL16}, 6, 1")
            P(f"v_mad_u32_u24 v{f}, v{f}, 14, v{m}")
            P(f"v_lshlrev_b32 v{f}, 1, v{f}")
            P(f"v_lshrrev_b32 v{t}, 9, v{vL16}")
            P(f"v_mul_u32_u24 v{t}, 224, v{t}")
            P(f"v_add_u32 v{f}, v{f}, v{t}")
            P(f"v_cmp_gt_u32 vcc, 14, v{m}")
            P(f"v_mov_b32 v{t}, {OOB}")
            P(f"v_cndmask_b32 v{f}, v{t}, v{f}, vcc")
            P(f"v_cndmask_b32 v{m}, v{f}, v{t}, {sr(sMHI, 2)}")
            if self.role == "Q":
                P(f"s_lshl_b32 s{sT0}, s{sHALF}, 3")
                P(f"s_add_u32 s{sT0}, s{sT0}, s{sW}")
                P(f"s_mul_i32 s{sT0}, s{sT0}, 1568")
            else:
                P(f"s_mul_i32 s{sT0}, s{sHEAD}, 1568")
            for s in range(2):
                for j in range(8):
                    d = 16 * s + 8 * (j >> 2) + (j & 3)
                    ad = m if (s == 1 and j >= 4) else f
                    self.tok["wphi"] = P.vmem(
                        f"buffer_load_ushort v{ACC1 + 16 + 8 * s + j}, v{ad}, {sr(SPHI, 4)}, s{sT0} offen offset:{56 * d}")

    def pack_wphi(self):
        P = self.P
        if not (self.role == "Q" or self.grp == "A"):
            return
        P.wait(vm=self.tok["wphi"])
        for j in range(8):
            P(f"v_lshl_or_b32 v{ACC1 + j}, v{ACC1 + 17 + 2 * j}, 16, v{ACC1 + 16 + 2 * j}")
        if self.role == "Q":
            base = self.plan["fixed"]["wphi"] * SLOT
            P(f"s_add_u32 s{sT0}, s{sW2K}, {base}")
            P(f"v_add_u32 v{TMP}, s{sT0}, v{vL16}")
            P.ds(f"ds_write_b128 v{TMP}, {vr(ACC1, 4)}")
            P.ds(f"ds_write_b128 v{TMP}, {vr(ACC1 + 4, 4)} offset:1024")

    def phase_a(self):
        P, cfg = self.P, self.cfg
        A = self.grp == "A"
        tga, tgd = TMP + 20, TMP + 19
        add = lambda d, g, f: d.setdefault(g, []).append(f)

        add(self.pre_bar, 0, lambda: P.wait(vm=self.tok["gate"]))
        add(self.pre_bar, cfg.g_zf, lambda: P.wait(vm=self.tok["zero"]))
        add(self.post_bar, 3, self.pack_wphi)
        if A:
            def zf():
                P(f"s_lshl_b32 s{sT0}, s{sHEAD}, 2")
                P(f"s_add_u32 s{sT0}, s{sT0}, 4")
            add(self.post_bar, cfg.g_zf, lambda: self.flag_store(zf, SDBG, data_is_tag=False, only_if_zero=sRB))
        ld = f"buffer_load_dword v{tgd}, v{tga}, {sr(SDBG, 4)}, 0 offen sc1"

        def tagload():
            P(f"s_lshl_b32 s{sT0}, s{sHEAD}, 2")
            P(f"s_add_u32 s{sT0}, s{sT0}, 4")
            P(f"v_mov_b32 v{tga}, s{sT0}")
            P(f"v_cndmask_b32 v{tga}, 0, v{tga}, {sr(sMHI, 2)}")
            self.tok["tag"] = P.vmem(ld)

        def tagcheck():
            P.wait(vm=self.tok["tag"])
            self.spin(ld, lambda: P(f"v_cmp_eq_u32 vcc, 0, v{tgd}"))
            P(f"v_readfirstlane_b32 s{sTAG}, v{tgd}")
        add(self.post_bar, cfg.g_tagload, tagload)
        add(self.pre_bar, G_P1, tagcheck)

        def start_kv():
            self.nfill = cfg.fill_kv
            self.fill.append(self.kv_epi_a() if A else self.kv_epi_b1())

        def scr_done():
            self.drain_fill()
            P.wait_all_lg()
        add(self.pre_bar, cfg.g_scr, scr_done)
        if not A:
            add(self.post_bar, cfg.g_scr, lambda: self.fill.append(self.kv_epi_b2()))
            add(self.pre_bar, cfg.g_scr + 3, self.drain_fill)
            add(self.pre_bar, cfg.g_kvflag, lambda: P.wait(vm=self.tok["atom"]))

            def kf():
                P(f"s_lshl_b32 s{sT0}, s{sHALF}, 4")
                P(f"s_add_u32 s{sT0}, s{sT0}, s{sRB}")
                P(f"s_lshl_b32 s{sT0}, s{sT0}, 3")
                P(f"s_add_u32 s{sT0}, s{sT0}, s{sCC}")
                P(f"s_lshl_b32 s{sT0}, s{sT0}, 2")
                P(f"s_add_u32 s{sT0}, s{sT0}, {WS_FKV}")
            add(self.post_bar, cfg.g_kvflag, lambda: self.flag_store(kf, SWS))

        steps = self.steps_kv() + self.steps_p(0) + self.steps_p(1)
        steps[28]["pre"] = start_kv

        def start_p1_epi():
            self.drain_fill()
            if self.role == "F":
                self.nfill = cfg.fill_f
                self.fill.append(self.f_epi(0))
            else:
                self.nfill = cfg.fill_q
                self.fill.append(self.q_epi(0))
        steps[56]["pre"] = start_p1_epi
        if self.role == "F":
            def h1_done():
                self.drain_fill()
                P.wait(vm=self.tok["h0"])
            add(self.pre_bar, cfg.g_h1flag, h1_done)
            if A:
                add(self.post_bar, cfg.g_h1flag, lambda: self.flag_store(lambda: self.hflag_off(WS_FH1), SWS))
        self.run_steps(steps)
        self.drain_fill()

    def hflag_off(self, base):
        P = self.P
        P(f"s_mul_i32 s{sT0}, s{sHALF}, 7")
        P(f"s_add_u32 s{sT0}, s{sT0}, s{sCC}")
        P(f"s_lshl_b32 s{sT1}, s{sRB}, 5")
        P(f"s_add_u32 s{sT0}, s{sT0}, s{sT1}")
        P(f"s_lshl_b32 s{sT0}, s{sT0}, 2")
        P(f"s_add_u32 s{sT0}, s{sT0}, {base}")

    def phase_b(self):
        P, cfg, by = self.P, self.cfg, self.plan["by"]
        A = self.grp == "A"
        add = lambda d, g, f: d.setdefault(g, []).append(f)
        fa, fd = TMP + 20, TMP + 19
        accb, acca = ACC0, ACC1
        hreg = lambda k: X + 4 * (k % 28)

        def poll_issue(base, n):
            P(f"v_lshrrev_b32 v{fa}, 4, v{vL16}")
            P(f"v_min_u32 v{fa}, {n - 1}, v{fa}")
            P(f"s_lshl_b32 s{sT0}, s{sRB}, 7")
            P(f"s_add_u32 s{sT0}, s{sT0}, {base}")
            P(f"v_lshl_add_u32 v{fa}, v{fa}, 2, s{sT0}")
            self.tok["poll"] = P.vmem(ld)
        ld = f"buffer_load_dword v{fd}, v{fa}, {sr(SWS, 4)}, 0 offen sc1"

        def poll_check():
            P.wait(vm=self.tok["poll"])
            self.spin(ld, lambda: P(f"v_cmp_ne_u32 vcc, s{sTAG}, v{fd}"))

        def hload(k):
            def f():
                if k < 28:
                    P(f"s_lshl_b32 s{sT0}, s{sTAB + k % 14}, 13")
                    if k >= 14:
                        P(f"s_add_u32 s{sT0}, s{sT0}, 4096")
                else:
                    P(f"s_add_u32 s{sT0}, s{sTAB}, {k - 28}")
                    P(f"s_and_b32 s{sT0}, s{sT0}, 7")
                    P(f"s_add_u32 s{sT0}, s{sT0}, 28")
                    P(f"s_lshl_b32 s{sT0}, s{sT0}, 12")
                self.tok[("h", k)] = P.vmem(f"buffer_load_dwordx4 {vr(hreg(k), 4)}, v{vH}, {sr(SWS, 4)}, s{sT0} offen sc1")
            return f

        self.barrier(G_E)
        poll_issue(WS_FH1, 14)
        self.fill.append(self.f_epi(1))
        while self.fill:
            self.pull(14)
            if self.pending:
                self.pending.pop(0)()
        self.flush_pending()
        t, u = TMP + 12, TMP + 13
        P(f"v_bfe_u32 v{t}, v{vL16}, 6, 2")
        P(f"v_lshrrev_b32 v{u}, 9, v{vL16}")
        P(f"v_lshl_add_u32 v{u}, v{u}, 2, v{t}")
        P(f"v_lshlrev_b32 v{aP}, 7, v{u}")
        P(f"v_lshrrev_b32 v{t}, 1, v{t}")
        P(f"v_lshl_or_b32 v{aP}, v{t}, 6, v{aP}")
        P(f"v_bfe_u32 v{t}, v{vL16}, 8, 1")
        P(f"v_lshl_or_b32 v{aP}, v{t}, 5, v{aP}")
        P(f"v_bfe_u32 v{t}, v{vL16}, 4, 2")
        P(f"v_lshl_or_b32 v{aP}, v{t}, 3, v{aP}")
        P(f"v_lshl_add_u32 v{aP}, s{sTG}, 11, v{aP}")
        P(f"v_xor_b32 v{aK}, 64, v{aP}")
        self.bases3(aP)
        self.bases3(aK)
        poll_check()
        for k in range(cfg.h1_first):
            hload(k)()
        add(self.pre_bar, G_B1, lambda: P.wait(vm=self.tok["h1"]))
        if A:
            add(self.post_bar, G_B1, lambda: self.flag_store(lambda: self.hflag_off(WS_FH2), SWS))

        def rest_h1():
            self.pending = [hload(k) for k in range(cfg.h1_first, 14)] + self.pending
        add(self.post_bar, G_B1, rest_h1)
        add(self.post_bar, G_B2 - 2, lambda: poll_issue(WS_FH2, 14))

        def start_h2():
            poll_check()
            for k in range(14, 28):
                hload(k)()
        add(self.pre_bar, G_B2, start_h2)
        add(self.post_bar, G_B3 - 3, lambda: poll_issue(WS_FO, 2))

        def start_o():
            poll_check()
            for k in range(28, 36):
                hload(k)()
        add(self.pre_bar, G_B3 - 1, start_o)

        steps = []
        for k in range(36):
            it = by[("w2", (k // 14, k % 14))] if k < 28 else by[("wo", k - 28)]

            def reads(buf, it=it):
                self.tr2(buf, aP, it.addr, 1024)
                return self.tr2(buf + 4, aK, it.addr, 1024)

            def mfma(buf, k=k):
                acc = accb if k < 28 else acca
                r = []
                for t_ in range(2):
                    d = vr(acc + 16 * t_, 16)
                    c = "0" if k in (0, 28) else d
                    r.append(f"v_mfma_f32_32x32x16_bf16 {d}, {vr(buf + 4 * t_, 4)}, {vr(hreg(k), 4)}, {c}")
                return r
            steps.append(dict(bar=G_B1 + k // 2 if k % 2 == 0 else None, reads=reads, mfma=mfma,
                              pre=lambda k=k: P.wait(vm=self.tok[("h", k)])))
        self.run_steps(steps)

        g, a0, t, u = TMP, TMP + 1, TMP + 5, TMP + 6
        P(f"s_lshl_b32 s{sT0}, s{sHALF}, 1")
        P(f"s_add_u32 s{sT0}, s{sT0}, s{sCH}")
        P(f"s_lshl_b32 s{sT0}, s{sT0}, 7")
        P(f"s_add_u32 s{sT0}, s{sT0}, {L_LOGIT}")
        P(f"v_bfe_u32 v{t}, v{vL16}, 4, 5")
        P(f"v_lshl_add_u32 v{u}, v{t}, 2, s{sT0}")
        tg_ = P.ds(f"ds_read_b32 v{g}, v{u}")
        P(f"v_lshl_add_u32 v{a0}, s{sCH}, 5, v{t}")
        P(f"v_lshlrev_b32 v{a0}, 8, v{a0}")
        P(f"v_lshl_add_u32 v{a0}, s{sTG}, 14, v{a0}")
        P(f"v_lshrrev_b32 v{u}, 9, v{vL16}")
        P(f"v_xor_b32 v{u}, v{u}, v{t}")
        P(f"v_and_b32 v{u}, 7, v{u}")
        P(f"v_lshl_or_b32 v{a0}, v{u}, 4, v{a0}")
        for q in range(1, 4):
            P(f"v_xor_b32 v{a0 + q}, {32 * q}, v{a0}")
        P.wait(lg=tg_)
        P(f"v_mul_f32 v{g}, {NLOG2E:#x}, v{g}")
        P(f"v_exp_f32 v{g}, v{g}")
        P(f"v_add_f32 v{g}, 1.0, v{g}")
        P(f"v_rcp_f32 v{g}, v{g}")
        P(f"v_sub_f32 v{t}, 1.0, v{g}")
        for j in range(32):
            P(f"v_mul_f32 v{accb + j}, v{accb + j}, v{t}")
        self.barrier(G_FIN)
        for ct in range(2):
            for q in range(4):
                r = 16 * ct + 4 * q
                for e in range(4):
                    P(f"v_fmac_f32 v{accb + r + e}, v{acca + r + e}, v{g}")
                P.ds(f"ds_write_b128 v{a0 + q}, {vr(accb + r, 4)} offset:{128 * ct}")
        ra, rb_, tk, oa = TMP + 8, TMP + 9, TMP + 10, TMP + 11
        P(f"v_lshrrev_b32 v{tk}, 7, v{vL16}")
        P(f"v_bfe_u32 v{u}, v{vL16}, 4, 3")
        P(f"v_lshlrev_b32 v{u}, 1, v{u}")
        P(f"v_xor_b32 v{u}, v{u}, v{tk}")
        P(f"v_lshl_add_u32 v{tk}, s{sW}, 3, v{tk}")
        P(f"v_lshlrev_b32 v{ra}, 8, v{tk}")
        P(f"v_lshl_or_b32 v{ra}, v{u}, 4, v{ra}")
        P(f"v_xor_b32 v{rb_}, 16, v{ra}")
        P(f"v_mul_u32_u24 v{oa}, 896, v{tk}")
        P(f"v_and_b32 v{u}, 0x70, v{vL16}")
        P(f"v_add_u32 v{oa}, v{oa}, v{u}")
        P(f"s_lshl_b32 s{sT0}, s{sRB}, 1")
        P(f"s_add_u32 s{sT0}, s{sT0}, s{sHALF}")
        P(f"s_mul_i32 s{sT0}, s{sT0}, {64 * 896}")
        P(f"s_lshl_b32 s{sT1}, s{sCC}, 7")
        P(f"s_add_u32 s{sT0}, s{sT0}, s{sT1}")
        P.wait_all_lg()
        self.stamp()
        P("s_barrier")
        toks = []
        for q in range(4):
            P.ds(f"ds_read_b128 {vr(X + 8 * q, 4)}, v{ra} offset:{16384 * q}")
            toks.append(P.ds(f"ds_read_b128 {vr(X + 8 * q + 4, 4)}, v{rb_} offset:{16384 * q}"))
        for q in range(1, 4):
            P.wait(lg=toks[q])
            for e in range(8):
                P(f"v_add_f32 v{X + e}, v{X + e}, v{X + 8 * q + e}")
        for e in range(4):
            P(f"v_cvt_pk_bf16_f32 v{X + 32 + e}, v{X + 2 * e}, v{X + 2 * e + 1}")
        P.vmem(f"buffer_store_dwordx4 {vr(X + 32, 4)}, v{oa}, {sr(SOUT, 4)}, s{sT0} offen")

    PHI = {0: ACCK, 1: ACC0, 2: X + 64, 3: X + 80}

    def q_epi(self, p):
        P = self.P
        acc = ACC0 if p == 0 else ACC1
        base = self.plan["fixed"]["wphi"] * SLOT
        yield "skip"
        yield "skip"
        for jj in range(2):
            def hsel(jj=jj):
                P(f"s_lshl_b32 s{sT1}, s{sCH}, 12")
                P(f"s_add_u32 s{sT1}, s{sT1}, {base + (4 * p + jj) * 2048}")
            out = self.PHI[2 * p + jj]
            yield from self.softmax(acc + 16 * jj, TMP + 8, TMP, TMP, out, out + 8, self.wphi_from_lds(hsel, TMP + 8))

    def q_tail(self):
        P = self.P
        fa, fd = TMP + 20, TMP + 18
        ld = f"buffer_load_dwordx2 {vr(fd, 2)}, v{fa}, {sr(SWS, 4)}, 0 offen sc1"
        self.barrier(G_E)
        self.fill.append(self.q_epi(1))
        self.pull(250)
        self.pull(250)
        self.pull(250)
        self.pull(250)
        self.pull(200)
        P(f"s_lshl_b32 s{sT0}, s{sHALF}, 9")
        P(f"s_add_u32 s{sT0}, s{sT0}, {WS_FKV}")
        P(f"v_lshrrev_b32 v{fa}, 1, v{vL16}")
        P(f"v_add_u32 v{fa}, s{sT0}, v{fa}")
        tk = P.vmem(ld)
        self.drain_fill()
        self.stamp()
        P.wait(vm=tk)

        def check():
            P(f"v_cmp_ne_u32 {sr(sTAB, 2)}, s{sTAG}, v{fd}")
            P(f"v_cmp_ne_u32 vcc, s{sTAG}, v{fd + 1}")
            P("s_nop 1")
            P(f"s_or_b64 vcc, vcc, {sr(sTAB, 2)}")
        self.spin(ld, check)
        self.stamp()
        kv, kp, a = X, X + 32, TMP
        P(f"v_lshrrev_b32 v{a}, 2, v{vL16}")
        P(f"s_lshl_b32 s{sT0}, s{sHALF}, 3")
        P(f"s_add_u32 s{sT0}, s{sT0}, s{sW}")
        P(f"s_lshl_b32 s{sT0}, s{sT0}, 13")
        P(f"s_add_u32 s{sT0}, s{sT0}, {WS_KV}")
        P(f"s_add_u32 s{sT1}, s{sT0}, 4096")
        toks = {}
        for sg in range(2):
            for j in range(14):
                toks[(sg, j)] = P.vmem(
                    f"buffer_load_dword v{kv + 16 * sg + j}, v{a}, {sr(SWS, 4)}, s{sT1 if sg else sT0} offen offset:{256 * j} sc1")
        P(f"v_lshl_add_u32 v{a}, s{sW}, 12, v{vL16}")
        P(f"v_mov_b32 v{kp + 7}, 0")
        P(f"v_mov_b32 v{kp + 15}, 0")
        for sg in range(2):
            for st in range(2):
                n = 4 if st == 0 else 3
                P.wait(vm=toks[(sg, 8 * st + 2 * n - 1)])
                for j in range(n):
                    r = kv + 16 * sg + 8 * st + 2 * j
                    P(f"v_cvt_pk_bf16_f32 v{kp + 8 * sg + 4 * st + j}, v{r}, v{r + 1}")
                P.ds(f"ds_write_b128 v{a}, {vr(kp + 8 * sg + 4 * st, 4)} offset:{1024 * (2 * sg + st)}")
        P(f"v_lshl_add_u32 v{a}, s{sCH}, 13, v{vL16}")
        P(f"s_lshl_b32 s{sT0}, s{sRB}, 2")
        P(f"s_add_u32 s{sT0}, s{sT0}, s{sTG}")
        P(f"s_mul_i32 s{sT0}, s{sT0}, 72")
        P(f"s_lshl_b32 s{sT1}, s{sHALF}, 3")
        P(f"s_add_u32 s{sT0}, s{sT0}, s{sT1}")
        P(f"s_lshl_b32 s{sT1}, s{sCH}, 1")
        P(f"s_add_u32 s{sT0}, s{sT0}, s{sT1}")
        P(f"s_add_u32 s{sT0}, s{sT0}, 56")
        P(f"s_lshl_b32 s{sT0}, s{sT0}, 11")
        P.wait_all_lg()
        self.stamp()
        P("s_barrier")
        accs = (ACC1, ACC1 + 16, ACC0 + 16, X + 96)
        rt = {}

        def rd(i):
            hl = 4 * (i >> 1) + (i & 1)
            for f in range(4):
                rt[(i, f)] = P.ds(f"ds_read_b128 {vr(X + 16 * i + 4 * f, 4)}, v{a} offset:{4096 * hl + 1024 * f}")

        def mm(i):
            d = vr(accs[i], 16)
            for f in range(4):
                P.wait(lg=rt[(i, f)])
                P(f"v_mfma_f32_32x32x16_bf16 {d}, {vr(X + 16 * i + 4 * f, 4)}, {vr(self.PHI[i] + 4 * f, 4)}, {d if f else '0'}")

        def fin(i):
            acc = accs[i]
            d0, d1 = TMP + 2, TMP + 3
            ob = WF + 8 * (i % 3)
            P(f"v_mov_b32 v{d0}, v{acc + 12}")
            P(f"v_mov_b32 v{d1}, v{acc + 12}")
            P(f"v_permlane32_swap_b32 v{d0}, v{d1}")
            P(f"v_add_f32 v{d1}, {EPS:#x}, v{d1}")
            P(f"v_rcp_f32 v{d1}, v{d1}")
            for j in range(0, 16, 2):
                P(f"v_mul_f32 v{acc + j}, v{acc + j}, v{d1}")
                P(f"v_mul_f32 v{acc + j + 1}, v{acc + j + 1}, v{d1}")
                P(f"v_cvt_pk_bf16_f32 v{ob + j // 2}, v{acc + j}, v{acc + j + 1}")
            P(f"v_cndmask_b32 v{ob + 6}, v{ob + 6}, 0, {sr(sMHI, 2)}")
            P(f"v_cndmask_b32 v{ob + 7}, v{ob + 7}, 0, {sr(sMHI, 2)}")
            hl = 4 * (i >> 1) + (i & 1)
            P(f"s_add_u32 s{sT1}, s{sT0}, {2048 * hl}")
            P.vmem(f"buffer_store_dwordx4 {vr(ob, 4)}, v{vL16}, {sr(SWS, 4)}, s{sT1} offen sc1")
            P.vmem(f"buffer_store_dwordx4 {vr(ob + 4, 4)}, v{vL16}, {sr(SWS, 4)}, s{sT1} offen offset:1024 sc1")
        rd(0)
        rd(1)
        rd(2)
        mm(0)
        rd(3)
        mm(1)
        fin(0)
        mm(2)
        fin(1)
        mm(3)
        fin(2)
        fin(3)
        self.stamp()
        P.wait_all_vm()
        self.stamp()
        P("s_barrier")
        if self.grp == "A":
            def of():
                P(f"s_lshl_b32 s{sT0}, s{sRB}, 5")
                P(f"s_add_u32 s{sT0}, s{sT0}, s{sHALF}")
                P(f"s_lshl_b32 s{sT0}, s{sT0}, 2")
                P(f"s_add_u32 s{sT0}, s{sT0}, {WS_FO}")
            self.flag_store(of, SWS)

    def finish(self):
        P = self.P
        if self.cfg.prof:
            P.wait_all_vm()
            self.stamp()
            P.smem(f"s_memrealtime {sr(sST, 2)}")
            P.wait_all_lg()
            P(f"v_writelane_b32 v{vSTAMP}, s{sST}, 63")
            P(f"s_lshl_b32 s{sT0}, s{sRB}, 1")
            P(f"s_add_u32 s{sT0}, s{sT0}, s{sHALF}")
            P(f"s_lshl_b32 s{sT0}, s{sT0}, 3")
            P(f"s_add_u32 s{sT0}, s{sT0}, s{sCC}")
            P(f"s_lshl_b32 s{sT0}, s{sT0}, 3")
            P(f"s_add_u32 s{sT0}, s{sT0}, s{sW}")
            P(f"s_lshl_b32 s{sT0}, s{sT0}, 8")
            P(f"s_add_u32 s{sT0}, s{sT0}, {WS_STAMP}")
            P(f"v_lshrrev_b32 v{TMP}, 2, v{vL16}")
            P.vmem(f"buffer_store_dword v{vSTAMP}, v{TMP}, {sr(SWS, 4)}, s{sT0} offen")
        P("s_endpgm")


def srd(P, d, ptr, size, off_reg=None):
    if off_reg is None:
        P(f"s_mov_b32 s{d}, s{ptr}")
        P(f"s_mov_b32 s{d + 1}, s{ptr + 1}")
        P(f"s_mov_b32 s{d + 2}, {size}")
    else:
        P(f"s_add_u32 s{d}, s{ptr}, s{off_reg}")
        P(f"s_addc_u32 s{d + 1}, s{ptr + 1}, 0")
        P(f"s_sub_u32 s{d + 2}, {size}, s{off_reg}")
    P(f"s_mov_b32 s{d + 3}, 0x20000")


def prologue(P, cfg):
    P("s_cmp_ge_u32 s2, 256")
    P("s_cbranch_scc1 L_exit")
    P.smem("s_load_dwordx16 s[36:51], s[0:1], 0")
    P.smem("s_load_dwordx8 s[52:59], s[0:1], 64")
    P.smem(f"s_memrealtime {sr(sTAB + 8, 2)}")
    if cfg.prof:
        P.smem(f"s_memtime {sr(sTAB + 10, 2)}")
    t, u, r8 = TMP, TMP + 1, TMP + 2
    P(f"v_lshrrev_b32 v{t}, 6, v0")
    P(f"v_and_b32 v{u}, 63, v0")
    P(f"v_readfirstlane_b32 s{sW}, v{t}")
    P(f"v_lshlrev_b32 v{vL16}, 4, v{u}")
    P(f"s_and_b32 s{sHALF}, s2, 1")
    P(f"s_bfe_u32 s{sR4}, s2, 0x20003")
    P(f"s_bfe_u32 s{sT0}, s2, 0x20001")
    P(f"s_lshl_b32 s{sT0}, s{sT0}, 2")
    P(f"s_add_u32 s{sRB}, s{sT0}, s{sR4}")
    P(f"s_lshr_b32 s{sCC}, s2, 5")
    P(f"s_lshl_b32 s{sT0}, s{sHALF}, 3")
    P(f"s_add_u32 s{sHEAD}, s{sT0}, s{sCC}")
    P(f"s_lshl_b32 s{sT0}, s{sR4}, 1")
    P(f"s_add_u32 s{sT0}, s{sT0}, s{sCC}")
    P(f"s_cmp_ge_u32 s{sT0}, 7")
    P(f"s_cselect_b32 s{sT1}, 7, 0")
    P(f"s_sub_u32 s{sTAB}, s{sT0}, s{sT1}")
    for j in range(1, 7):
        P(f"s_add_u32 s{sT0}, s{sTAB + j - 1}, 1")
        P(f"s_cmp_eq_u32 s{sT0}, 7")
        P(f"s_cselect_b32 s{sTAB + j}, 0, s{sT0}")
    P(f"s_lshl_b32 s{sW1K}, s{sW}, 10")
    P(f"s_lshl_b32 s{sW2K}, s{sW}, 11")
    P(f"s_mov_b32 s{sSPIN}, s2")
    P(f"v_lshrrev_b32 v{r8}, 3, v{u}")
    P(f"v_lshl_add_u32 v{t}, s{sW}, 4, v{r8}")
    P(f"v_mul_u32_u24 v{vX0}, 896, v{t}")
    P(f"v_lshrrev_b32 v{t}, 4, v{u}")
    P(f"v_xor_b32 v{t}, v{t}, v{u}")
    P(f"v_and_b32 v{t}, 7, v{t}")
    P(f"v_lshl_add_u32 v{vX0}, v{t}, 4, v{vX0}")
    P(f"v_xor_b32 v{vX1}, 64, v{vX0}")
    P(f"v_add_u32 v{vX1}, {8 * 896}, v{vX1}")
    ch2, row = TMP + 3, TMP + 4
    P(f"v_lshrrev_b32 v{t}, 2, v{u}")
    P(f"v_xor_b32 v{t}, v{t}, v{u}")
    P(f"v_bfe_u32 v{ch2}, v{t}, 2, 1")
    P(f"v_lshl_add_u32 v{row}, s{sW}, 3, v{r8}")
    P(f"v_mul_u32_u24 v{vKV}, 2688, v{row}")
    P(f"v_mul_u32_u24 v{t}, 896, v{ch2}")
    P(f"v_add_u32 v{vKV}, v{vKV}, v{t}")
    P(f"v_and_b32 v{t}, 48, v{vL16}")
    P(f"s_mul_i32 s{sT0}, s{sHEAD}, 56")
    P(f"s_and_b32 s{sT0}, s{sT0}, 0xfff0")
    P(f"s_add_u32 s{sT0}, s{sT0}, 896")
    P(f"v_add3_u32 v{vKV}, v{vKV}, v{t}, s{sT0}")
    P(f"s_mul_i32 s{sT1}, s{sRB}, {128 * 896}")
    P.wait_all_lg()
    srd(P, SX, P_X, 2048 * 896, sT1)
    srd(P, SQKV, P_QKV, 448 * 2688)


def prologue2(P, cfg):
    t, u = TMP, TMP + 1
    ch2, row = TMP + 3, TMP + 4
    srd(P, SWS, P_WS, WS_SIZE)
    srd(P, SDBG, P_DBG, 256)
    P(f"s_or_b32 s{sT0}, s{sSPIN}, s{sW}")
    P(f"v_or_b32 v{t}, s{sT0}, v{vL16}")
    P(f"v_cmp_eq_u32 vcc, 0, v{t}")
    P(f"v_mov_b32 v{u}, {OOB}")
    P(f"s_or_b32 s{sT0}, s{sTAB + 8}, 1")
    P(f"v_cndmask_b32 v{t}, v{u}, v{t}, vcc")
    P(f"v_mov_b32 v{u}, s{sT0}")
    P.vmem(f"buffer_store_dword v{u}, v{t}, {sr(SDBG, 4)}, 0 offen sc1")
    if cfg.prof:
        P(f"v_mov_b32 v{vSTAMP}, 0")
        P(f"v_writelane_b32 v{vSTAMP}, s{sTAB + 8}, 62")
        P(f"v_writelane_b32 v{vSTAMP}, s{sTAB + 10}, 61")
    P(f"s_mul_i32 s{sT0}, s{sHALF}, 7")
    P(f"s_add_u32 s{sT0}, s{sT0}, s{sCC}")
    P(f"s_lshl_b32 s{sT0}, s{sT0}, 8")
    srd(P, SW1, P_W1, 448 * 3584, sT0)
    srd(P, SW3, P_W3, 448 * 3584, sT0)
    P(f"s_lshl_b32 s{sT0}, s{sCC}, 7")
    srd(P, SW2, P_W2, 1792 * 896, sT0)
    srd(P, SWO, P_WO, 448 * 896, sT0)
    srd(P, SOUT, P_OUT, 2048 * 896)
    srd(P, SPHI, P_PHI, 16 * 1568)
    srd(P, SGATE, P_GATE, 896)
    P(f"s_mov_b32 s{sROT}, s{sTAB}")
    P(f"s_and_b32 s{sTG}, s{sW}, 3")
    P(f"s_lshr_b32 s{sCH}, s{sW}, 2")
    P(f"s_mov_b32 s{sL}, {LOG2E:#x}")
    P(f"s_mov_b32 s{sMHI}, 0")
    P(f"s_mov_b32 s{sMHI + 1}, -1")
    P(f"s_mov_b32 s{sMG}, 0x10000000")
    P(f"s_mov_b32 s{sMG + 1}, 0x10000000")
    h, tt = TMP + 5, TMP + 6
    P(f"v_lshrrev_b32 v{h}, 9, v{vL16}")
    P(f"v_bfe_u32 v{tt}, v{vL16}, 4, 5")
    P(f"v_lshl_add_u32 v{t}, s{sTG}, 5, v{tt}")
    P(f"v_lshlrev_b32 v{ACC0}, 7, v{t}")
    P(f"v_bfe_u32 v{t}, v{tt}, 1, 3")
    P(f"v_xor_b32 v{t}, v{t}, v{h}")
    P(f"v_lshl_or_b32 v{ACC0}, v{t}, 4, v{ACC0}")
    for s in range(4):
        if s:
            P(f"v_xor_b32 v{ACC0 + 3 * s}, {32 * s}, v{ACC0}")
        P(f"v_add_u32 v{ACC0 + 3 * s + 1}, 0x10000, v{ACC0 + 3 * s}")
        P(f"v_add_u32 v{ACC0 + 3 * s + 2}, 0x20000, v{ACC0 + 3 * s}")
    P(f"v_lshlrev_b32 v{t}, 4, v{h}")
    P(f"v_add_u32 v{ACC0 + 12}, {L_GATE}, v{t}")
    r, q8, rw = TMP + 7, TMP + 8, TMP + 9
    P(f"v_bfe_u32 v{r}, v{vL16}, 6, 2")
    P(f"v_lshl_add_u32 v{rw}, v{h}, 3, v{r}")
    P(f"v_bfe_u32 v{t}, v{vL16}, 8, 1")
    P(f"v_bfe_u32 v{u}, v{vL16}, 4, 2")
    P(f"v_lshl_or_b32 v{q8}, v{t}, 2, v{u}")
    P(f"v_lshrrev_b32 v{t}, 1, v{r}")
    P(f"v_xor_b32 v{t}, s{sCH}, v{t}")
    P(f"v_lshlrev_b32 v{t}, 6, v{t}")
    P(f"v_lshl_or_b32 v{t}, v{rw}, 7, v{t}")
    P(f"v_lshl_or_b32 v{aP}, v{q8}, 3, v{t}")
    P(f"s_and_b32 s{sT0}, s{sHEAD}, 1")
    P(f"v_add_u32 v{u}, s{sT0}, v{q8}")
    P(f"v_and_b32 v{u}, 7, v{u}")
    P(f"v_lshl_or_b32 v{aK}, v{u}, 3, v{t}")
    P(f"v_add_u32 v{aK + 1}, 0x10000, v{aK}")
    P(f"v_add_u32 v{aK + 2}, 0x20000, v{aK}")
    P(f"v_mul_u32_u24 v{vWP}, 3584, v{row}")
    P(f"v_lshl_add_u32 v{vWP}, v{ch2}, 6, v{vWP}")
    P(f"v_and_b32 v{t}, 48, v{vL16}")
    P(f"v_add_u32 v{vWP}, v{vWP}, v{t}")


def q_setup(P):
    t, u = TMP, TMP + 1
    r, q8, rw = TMP + 7, TMP + 8, TMP + 9
    P(f"v_lshrrev_b32 v{t}, 8, v{vL16}")
    P(f"v_lshl_add_u32 v{u}, s{sW}, 2, v{t}")
    P(f"v_mul_u32_u24 v{vWP}, 2688, v{u}")
    P(f"v_lshlrev_b32 v{t}, 6, v{t}")
    P(f"v_sub_u32 v{t}, v{vL16}, v{t}")
    P(f"v_and_b32 v{t}, 0xf0, v{t}")
    P(f"v_min_u32 v{t}, {13 * 16}, v{t}")
    P(f"s_mul_i32 s{sT0}, s{sHALF}, 448")
    P(f"v_add3_u32 v{vWP}, v{vWP}, v{t}, s{sT0}")
    P(f"v_min_u32 v{t}, 6, v{q8}")
    P(f"v_lshlrev_b32 v{t}, 3, v{t}")
    P(f"v_lshl_add_u32 v{t}, v{r}, 6, v{t}")
    P(f"s_mul_i32 s{sT0}, s{sCH}, 112")
    P(f"v_add_u32 v{t}, s{sT0}, v{t}")
    P(f"v_and_b32 v{t}, 0xff, v{t}")
    P(f"v_lshl_or_b32 v{aP}, v{rw}, 8, v{t}")


def far_jump(P, target, uid):
    P(f"s_getpc_b64 {sr(sTAB + 12, 2)}")
    P(f"L_pc_{uid}:")
    P(f"s_add_u32 s{sTAB + 12}, s{sTAB + 12}, {target}-L_pc_{uid}")
    P(f"s_addc_u32 s{sTAB + 13}, s{sTAB + 13}, 0")
    P(f"s_setpc_b64 {sr(sTAB + 12, 2)}")


def build(cfg):
    plans = {r: make_plan(r, cfg) for r in "FQ"}
    first = [(it.kind, it.idx, it.slot) for it in plans["F"]["sched"][-1]]
    P0 = Prog()
    prologue(P0, cfg)
    P0(f"s_cmp_eq_u32 s{sCC}, 7")
    P0("s_cbranch_scc1 L_Q")
    lines = list(P0.lines)
    stats = {}
    for role in "FQ":
        Pr = P0.fork()
        if role == "Q":
            Pr("L_Q:")
        g0 = Gen(Pr, role, "A", plans[role], cfg)
        g0.queue_stage(-1)
        g0.flush_pending()
        prologue2(Pr, cfg)
        if cfg.prefetch_code:
            t = TMP + 10
            Pr(f"s_getpc_b64 {sr(sTAB + 12, 2)}")
            Pr(f"L_pf_{role}:")
            Pr(f"s_add_u32 s{sTAB + 12}, s{sTAB + 12}, L_code_begin-L_pf_{role}+0x100000")
            Pr(f"s_addc_u32 s{sTAB + 13}, s{sTAB + 13}, 0")
            Pr(f"s_sub_u32 s{sTAB + 12}, s{sTAB + 12}, 0x100000")
            Pr(f"s_subb_u32 s{sTAB + 13}, s{sTAB + 13}, 0")
            Pr(f"s_lshr_b32 s{sT0}, s{sSPIN}, 3")
            Pr(f"s_lshl_b32 s{sT0}, s{sT0}, 3")
            Pr(f"s_add_u32 s{sT0}, s{sT0}, s{sW}")
            Pr(f"s_lshl_b32 s{sT0}, s{sT0}, 8")
            Pr(f"v_lshrrev_b32 v{t}, 2, v{vL16}")
            Pr(f"v_add_u32 v{t}, s{sT0}, v{t}")
            Pr(f"v_min_u32 v{t}, L_code_end-L_code_begin-4, v{t}")
            Pr.vmem(f"global_load_dword v{t}, v{t}, {sr(sTAB + 12, 2)}")
        if role == "Q":
            q_setup(Pr)
        Pr(f"v_add_u32 v{aP + 1}, 0x10000, v{aP}")
        Pr(f"v_add_u32 v{aP + 2}, 0x20000, v{aP}")
        Pr(f"s_cmp_eq_u32 s{sCH}, 1")
        Pr(f"s_cbranch_scc1 L_{role}B")
        lines += Pr.lines
        for grp in "AB":
            P = Pr.fork()
            if grp == "B":
                P(f"L_{role}B:")
            g = Gen(P, role, grp, plans[role], cfg)
            g.tok = dict(g0.tok)
            g.early_setup()
            g.phase_a()
            if role == "F":
                g.phase_b()
            else:
                g.q_tail()
            g.finish()
            lines += P.lines
            stats[role + grp] = (len(P.lines), g.nstamp)
    lines.append("L_exit:")
    lines.append("s_endpgm")
    lines, added = pad_hazards(lines)
    body = "\n".join(l if l.endswith(":") else "    " + l for l in lines)
    k = NAME + "_kernel"
    asm = (HEADER + f"; @launch grid=(256,1,1) block=(512,1,1) lds={LDS_BYTES}\n"
           f'.amdgcn_target "amdgcn-amd-amdhsa--gfx950"\n.text\n.globl {k}\n.p2align 8\n.type {k},@function\n{k}:\n'
           f"L_code_begin:\n{body}\nL_code_end:\n"
           f'.section .rodata,"a"\n.p2align 6\n.amdhsa_kernel {k}\n'
           "  .amdhsa_next_free_vgpr 256\n  .amdhsa_next_free_sgpr 102\n  .amdhsa_accum_offset 256\n"
           "  .amdhsa_group_segment_fixed_size 0\n  .amdhsa_kernarg_size 96\n  .amdhsa_user_sgpr_count 2\n"
           "  .amdhsa_user_sgpr_kernarg_segment_ptr 1\n  .amdhsa_system_sgpr_workgroup_id_x 1\n"
           "  .amdhsa_float_denorm_mode_32 3\n.end_amdhsa_kernel\n")
    return asm, plans, stats, added


def main():
    cfg = Cfg()
    out = f"cdna_kernels/{NAME}.s"
    for a in sys.argv[1:]:
        k, v = a.split("=", 1)
        if k == "out":
            out = v
        else:
            setattr(cfg, k, eval(v))
    asm, plans, stats, added = build(cfg)
    open(out, "w").write(asm)
    print("wrote", out, "lines", asm.count("\n"), "nops added", added, stats)
    for role in "FQ":
        print(role, " ".join(f"{g}:[" + ",".join(f"{it.kind}{it.idx}@{it.slot}".replace(" ", "") for it in its) + "]"
                             for g, its in plans[role]["sched"].items() if its))


if __name__ == "__main__":
    main()
```
